```python
import torch

def _softmax(x, axis=-1):
    return torch.softmax(x, dim=axis)
def _gelu(x):
    return torch.nn.functional.gelu(x, approximate="tanh")
def _silu(x):
    return torch.nn.functional.silu(x)
def _sigmoid(x):
    return torch.sigmoid(x)
def _layernorm(x, axis=-1, eps=1e-5):
    m = x.mean(dim=axis, keepdim=True)
    v = x.var(dim=axis, keepdim=True, unbiased=False)
    return (x - m) / torch.sqrt(v + eps)
def _scatter_add(tgt, idx, src, axis=0):
    return tgt.clone().index_add_(axis, idx, src)
def _segment_sum(src, seg, n):
    out = torch.zeros((n,) + src.shape[1:], dtype=src.dtype)
    return out.index_add_(0, seg, src)
def _pad(x, pw):
    flat = tuple(v for pair in reversed(pw) for v in pair)
    return torch.nn.functional.pad(x, flat)

kernel_name = 'sequential_preLN__grouped_kv_mqa__mixer_s_mlp__prompt'

def setup_inputs():

    _w = (lambda a: (lambda t: t.to(torch.bfloat16) if t.is_floating_point() else t)(torch.as_tensor(a)))
    def _A_setup():
        B, S, D, H = 1, 2048, 640, 32
        Dh = D // H
        return {
            "x": _w((lambda *s: torch.randn(*s, dtype=torch.bfloat16) * 0.05)(B, S, D)),
            "wq": _w((lambda *s: torch.randn(*s, dtype=torch.bfloat16) * 0.05)(D, H * Dh)),
            "wk": _w((lambda *s: torch.randn(*s, dtype=torch.bfloat16) * 0.05)(D, Dh)),
            "wv": _w((lambda *s: torch.randn(*s, dtype=torch.bfloat16) * 0.05)(D, Dh)),
            "wo": _w((lambda *s: torch.randn(*s, dtype=torch.bfloat16) * 0.05)(H * Dh, D)),
        }
    _A_in = _A_setup()

    def _B_setup():
        B, S, D, F = 1, 2048, 640, 1728
        return {
            "x":  _w((lambda *s: torch.randn(*s, dtype=torch.bfloat16) * 0.05)(B, S, D)),
            "w1": _w((lambda *s: torch.randn(*s, dtype=torch.bfloat16) * 3.2)(D, D) * (D ** -0.5)),
            "w2": _w((lambda *s: torch.randn(*s, dtype=torch.bfloat16) * 3.2)(D, D) * (D ** -0.5)),
            "w3": _w((lambda *s: torch.randn(*s, dtype=torch.bfloat16) * 3.2)(D, F) * (D ** -0.5)),
            "w4": _w((lambda *s: torch.randn(*s, dtype=torch.bfloat16) * 3.2)(F, D) * (F ** -0.5)),
        }
    _B_in = _B_setup()

    return {
        "A_x": _A_in["x"],
        "A_wq": _A_in["wq"],
        "A_wk": _A_in["wk"],
        "A_wv": _A_in["wv"],
        "A_wo": _A_in["wo"],
        "B_x": _B_in["x"],
        "B_w1": _B_in["w1"],
        "B_w2": _B_in["w2"],
        "B_w3": _B_in["w3"],
        "B_w4": _B_in["w4"],
    }

def reference(A_x, A_wq, A_wk, A_wv, A_wo, B_x, B_w1, B_w2, B_w3, B_w4):
    def _A_ref(x, wq, wk, wv, wo):
        B, S, D = x.shape
        H = 32
        Dh = D // H
        q = (lambda x, *d: x.permute(*d))((x @ wq).reshape(B, S, H, Dh), 0, 2, 1, 3)
        k = x @ wk
        v = x @ wv
        scores = torch.einsum("bhqd,bkd->bhqk", q, k) * (Dh ** -0.5)
        p = _softmax(scores, axis=-1)
        o = torch.einsum("bhqk,bkd->bhqd", p, v)
        return (lambda x, *d: x.permute(*d))(o, 0, 2, 1, 3).reshape(B, S, H * Dh) @ wo

    def _B_ref(x, w1, w2, w3, w4):
        B, S, D = x.shape
        h = _gelu(_layernorm(x, axis=-1) @ w1)
        c = D // 4
        g0 = _pad(h[:, :, 0*c:1*c], ((0, 0), (1, 0), (0, 0)))[:, :S, :]
        g1 = _pad(h[:, :, 1*c:2*c], ((0, 0), (0, 1), (0, 0)))[:, 1:, :]
        g2 = _pad(h[:, :, 2*c:3*c], ((0, 0), (2, 0), (0, 0)))[:, :S, :]
        g3 = _pad(h[:, :, 3*c:   ], ((0, 0), (0, 2), (0, 0)))[:, 2:, :]
        hs = torch.concatenate([g0, g1, g2, g3], axis=-1) @ w2
        x1 = x + hs
        h2 = _gelu(_layernorm(x1, axis=-1) @ w3) @ w4
        return x1 + h2

    x = A_x
    h = x + _A_ref(_layernorm(x, axis=-1), A_wq, A_wk, A_wv, A_wo)
    h2 = h + _B_ref(_layernorm(h, axis=-1), B_w1, B_w2, B_w3, B_w4)
    return h2
```

```python
import math, sys, struct

KNAME = "sequential_preLN__grouped_kv_mqa__mixer_s_mlp__prompt"

S, D, H, DH, F = 2048, 640, 32, 20, 1728
WS_Q, WS_KF, WS_VF, WS_O, WS_H, WS_XP, WS_G, WS_X1, WS_G2 = (
    0x0, 0x280000, 0x2A0000, 0x300000, 0x580000, 0x800000, 0xA80000, 0xD00000, 0xF80000)
ACT = S * D * 2
G2SZ = S * F * 2
ARG = dict(x=0, wq=8, wk=16, wv=24, wo=32, bx=40, w1=48, w2=56, w3=64, w4=72, out=80, dbg=88, ws=96)

def f32(x):
    return struct.unpack('<I', struct.pack('<f', x))[0]

class Em:
    def __init__(self):
        self.l = []
    def __call__(self, s):
        self.l.append("    " + s)
    def lab(self, s):
        self.l.append(s + ":")
    def raw(self, s):
        self.l.append(s)

def vr(b, n):
    return f"v[{b}:{b+n-1}]"

def mk_srd(e, sd, ptr, off, size):
    if off:
        e(f"s_add_u32 s{sd}, s{ptr}, 0x{off:x}")
        e(f"s_addc_u32 s{sd+1}, s{ptr+1}, 0")
    else:
        e(f"s_mov_b32 s{sd}, s{ptr}")
        e(f"s_mov_b32 s{sd+1}, s{ptr+1}")
    e(f"s_mov_b32 s{sd+2}, 0x{size:x}")
    e(f"s_mov_b32 s{sd+3}, 0x00020000")

def kernel_head(e, name):
    e.raw(f".globl {name}")
    e.raw(".p2align 8")
    e.raw(f".type {name},@function")
    e.lab(name)

def kernel_desc(name, vgpr=256, sgpr=96):
    return f""".amdhsa_kernel {name}
  .amdhsa_next_free_vgpr {vgpr}
  .amdhsa_next_free_sgpr {sgpr}
  .amdhsa_accum_offset {vgpr}
  .amdhsa_group_segment_fixed_size 0
  .amdhsa_kernarg_size 104
  .amdhsa_user_sgpr_count 2
  .amdhsa_user_sgpr_kernarg_segment_ptr 1
  .amdhsa_system_sgpr_workgroup_id_x 1
.end_amdhsa_kernel
"""

def nop(e, n):
    while n > 0:
        k = min(n, 16)
        e(f"s_nop {k-1}")
        n -= k

V_TID, V_M, V_G, V_T0, V_T1, V_T2, V_T3, V_T4, V_T5, V_T6, V_T7 = range(0, 11)
V_SUM, V_SQ, V_RSTD, V_NB, V_ONES, V_X16 , V_X32 = range(11, 18)
V_AOFF = 18
V_WADDR = 22
V_WBASE = 23
V_OOFF = 24
V_PK = 26
V_ACC = 28
V_WF = 64
V_AF = 136
V_ST = 64

def buf_ptr(e, spec, sd, size, ptrs):
    kind, val = spec
    if kind == 'in':
        mk_srd(e, sd, ptrs[val], 0, size)
    else:
        mk_srd(e, sd, ptrs['ws'], val, size)

def ln_stats(e, nreg, K):
    e(f"v_mov_b32 v{V_SUM}, 0")
    e(f"v_mov_b32 v{V_SQ}, 0")
    e(f"v_mov_b32 v{V_ONES}, 0x3f803f80")
    nop(e, 1)
    for i in range(nreg):
        e(f"v_dot2c_f32_bf16 v{V_SUM}, v{V_AF+i}, v{V_ONES}")
        e(f"v_dot2c_f32_bf16 v{V_SQ}, v{V_AF+i}, v{V_AF+i}")
    nop(e, 4)
    for src in (V_SUM, V_SQ):
        e(f"ds_swizzle_b32 v{V_T0}, v{src} offset:0x401F")
        e("s_waitcnt lgkmcnt(0)")
        e(f"v_add_f32 v{src}, v{src}, v{V_T0}")
        nop(e, 1)
        e(f"ds_bpermute_b32 v{V_T0}, v{V_X32}, v{src}")
        e("s_waitcnt lgkmcnt(0)")
        e(f"v_add_f32 v{src}, v{src}, v{V_T0}")
    e(f"v_mul_f32 v{V_SUM}, 0x{f32(1.0/K):08x}, v{V_SUM}")
    e(f"v_mul_f32 v{V_SQ}, 0x{f32(1.0/K):08x}, v{V_SQ}")
    e(f"v_fma_f32 v{V_SQ}, -v{V_SUM}, v{V_SUM}, v{V_SQ}")
    e(f"v_max_f32 v{V_SQ}, 0, v{V_SQ}")
    e(f"v_add_f32 v{V_SQ}, 0x{f32(1e-5):08x}, v{V_SQ}")
    e(f"v_rsq_f32 v{V_RSTD}, v{V_SQ}")
    nop(e, 1)
    e(f"v_mul_f32 v{V_NB}, v{V_SUM}, v{V_RSTD}")
    e(f"v_sub_f32 v{V_NB}, 0, v{V_NB}")

def ln_apply(e, nreg):
    for i in range(nreg):
        r = V_AF + i
        a, b = (V_T0, V_T1) if i % 2 == 0 else (V_T2, V_T3)
        e(f"v_lshlrev_b32 v{a}, 16, v{r}")
        e(f"v_and_b32 v{b}, 0xffff0000, v{r}")
        e(f"v_fma_f32 v{a}, v{a}, v{V_RSTD}, v{V_NB}")
        e(f"v_fma_f32 v{b}, v{b}, v{V_RSTD}, v{V_NB}")
        e(f"v_cvt_pk_bf16_f32 v{r}, v{a}, v{b}")

def gemm_body(e, c, ptrs, tag):
    nw, NT, K, KC = c['nw'], c['NT'], c['K'], c['KC']
    T = nw * 64
    rowbytes = NT * 32
    nch = K // KC
    kst = KC // 32
    mode = c['mode']
    SA, SW, SO, SR1, SR2, SX = 8, 12, 16, 20, 24, 28
    astride = c['astride']
    buf_ptr(e, c['a'], SA, c['asize'], ptrs)
    if c.get('w') is not None:
        buf_ptr(e, c['w'], SW, c['wsize'], ptrs)
    buf_ptr(e, c['o'], SO, c['osize'], ptrs)
    if c.get('r1'): buf_ptr(e, c['r1'], SR1, ACT, ptrs)
    if c.get('r2'): buf_ptr(e, c['r2'], SR2, ACT, ptrs)
    if c.get('xp'): buf_ptr(e, c['xp'], SX, ACT, ptrs)
    e(f"v_and_b32 v{V_M}, 15, v{V_TID}")
    e(f"v_bfe_u32 v{V_G}, v{V_TID}, 4, 2")
    e(f"v_lshrrev_b32 v{V_T0}, 6, v{V_TID}")
    e(f"v_lshlrev_b32 v{V_T0}, 4, v{V_T0}")
    e(f"v_add_u32 v{V_T0}, v{V_T0}, v{V_M}")
    e(f"s_mul_i32 s5, s3, {16*nw}")
    e(f"v_add_u32 v{V_T0}, s5, v{V_T0}")
    e(f"v_mov_b32 v{V_T7}, v{V_T0}")
    e(f"v_and_b32 v{V_T1}, 63, v{V_TID}")
    e(f"v_xor_b32 v{V_X32}, 32, v{V_T1}")
    e(f"v_lshlrev_b32 v{V_X32}, 2, v{V_X32}")
    e(f"s_mov_b32 s6, {astride}")
    e(f"v_lshlrev_b32 v{V_T2}, 4, v{V_G}")
    shifts = [-1, 1, -2, 2] if mode == 'shift' else [0]
    for i, sh in enumerate(shifts):
        e(f"v_add_u32 v{V_T1}, {sh}, v{V_T0}" if sh else f"v_mov_b32 v{V_T1}, v{V_T0}")
        e(f"v_mul_lo_u32 v{V_T1}, v{V_T1}, s6")
        e(f"v_add_u32 v{V_AOFF+i}, v{V_T1}, v{V_T2}")
    for i in range(NT * 4):
        e(f"v_mov_b32 v{V_ACC+i}, 0")
    e(f"v_lshrrev_b32 v{V_T1}, 2, v{V_M}")
    e(f"v_lshl_add_u32 v{V_T1}, v{V_G}, 3, v{V_T1}")
    e(f"s_mov_b32 s7, {rowbytes}")
    e(f"v_mul_lo_u32 v{V_T1}, v{V_T1}, s7")
    e(f"v_and_b32 v{V_T2}, 3, v{V_M}")
    e(f"v_lshl_add_u32 v{V_WBASE}, v{V_T2}, 3, v{V_T1}")
    e(f"s_mul_i32 s4, s4, {NT*32}")

    for ch in range(nch):
        fullA = mode in ('ln', 'ln2')
        nA = (K // 32 if ch == 0 else 0) if fullA else kst
        abase = ch * kst if fullA else 0
        for s in range(nA):
            ks = ch * kst + s
            ao = V_AOFF + (ks // 5 if mode == 'shift' else 0)
            e(f"buffer_load_dwordx4 {vr(V_AF+4*s,4)}, v{ao}, s[{SA}:{SA+3}], 0 offen offset:{ks*64}")
        if c.get('wkv'):
            for r in range(4):
                e(f"v_mov_b32 v{V_ST+r}, 0")
            e(f"v_lshlrev_b32 v{V_T1}, 4, v{V_TID}")
            for i in range(20):
                if i == 16:
                    e(f"v_add_u32 v{V_T1}, 65536, v{V_T1}")
                e(f"ds_write_b128 v{V_T1}, {vr(V_ST,4)} offset:{(i%16)*4096}")
            SK, SV = 12, 24
            e(f"v_lshlrev_b32 v{V_T2}, 2, v{V_TID}")
            for i in range(25):
                e(f"s_movk_i32 s64, {i*1024}")
                e(f"buffer_load_dword v{V_ST+i}, v{V_T2}, s[{SK}:{SK+3}], s64 offen")
                e(f"buffer_load_dword v{V_ST+25+i}, v{V_T2}, s[{SV}:{SV+3}], s64 offen")
            npend = 50
        else:
            ppr = rowbytes // 16
            npieces = (KC * ppr + T - 1) // T
            assert npieces * 4 <= 72 + 0 or True
            magic = (65536 + ppr - 1) // ppr
            assert all(((cc * magic) >> 16) == cc // ppr for cc in range(npieces * T))
            e(f"s_mov_b32 s64, {magic}")
            e(f"s_mov_b32 s65, {ppr}")
            e(f"s_mov_b32 s66, {c['wstride']}")
            e(f"s_mul_i32 s67, s66, {ch*KC}")
            e(f"s_add_u32 s67, s67, s4")
        if not c.get('wkv'):
            batches = [list(range(b, min(b + 18, npieces))) for b in range(0, npieces, 18)]
        first_wait_done = False
        def do_ln():
            if mode in ('ln', 'ln2') and ch == 0:
                ln_stats(e, nA * 4, K)
                ln_apply(e, nA * 4)
                if c.get('xp'):
                    e(f"s_cmp_lg_u32 s4, 0")
                    e(f"s_cbranch_scc1 L_{tag}_noxp")
                    for s in range(nA):
                        e(f"buffer_store_dwordx4 {vr(V_AF+4*s,4)}, v{V_AOFF}, s[{SX}:{SX+3}], 0 offen offset:{s*64}")
                    e.lab(f"L_{tag}_noxp")
                if mode == 'ln2':
                    ln_stats(e, nA * 4, K)
                    ln_apply(e, nA * 4)
        if c.get('wkv'):
            e(f"s_waitcnt vmcnt({npend})")
            do_ln()
            e("s_waitcnt vmcnt(0) lgkmcnt(0)")
            e("s_barrier")
            for i in range(25):
                e(f"v_add_u32 v{V_T1}, {i*256}, v{V_TID}")
                e(f"v_mul_u32_u24 v{V_T2}, 6554, v{V_T1}")
                e(f"v_lshrrev_b32 v{V_T2}, 16, v{V_T2}")
                e(f"v_mul_u32_u24 v{V_T3}, 10, v{V_T2}")
                e(f"v_sub_u32 v{V_T3}, v{V_T1}, v{V_T3}")
                e(f"v_lshlrev_b32 v{V_T2}, 7, v{V_T2}")
                e(f"v_lshl_add_u32 v{V_T2}, v{V_T3}, 2, v{V_T2}")
                e(f"ds_write_b32 v{V_T2}, v{V_ST+i}")
                e(f"ds_write_b32 v{V_T2}, v{V_ST+25+i} offset:64")
        else:
            for bi, batch in enumerate(batches):
                for n, i in enumerate(batch):
                    e(f"v_add_u32 v{V_T1}, {i*T}, v{V_TID}")
                    e(f"v_mul_lo_u32 v{V_T2}, v{V_T1}, s64")
                    e(f"v_lshrrev_b32 v{V_T2}, 16, v{V_T2}")
                    e(f"v_mul_lo_u32 v{V_T3}, v{V_T2}, s65")
                    e(f"v_sub_u32 v{V_T3}, v{V_T1}, v{V_T3}")
                    e(f"v_mul_lo_u32 v{V_T2}, v{V_T2}, s66")
                    e(f"v_lshl_add_u32 v{V_T2}, v{V_T3}, 4, v{V_T2}")
                    e(f"buffer_load_dwordx4 {vr(V_ST+4*n,4)}, v{V_T2}, s[{SW}:{SW+3}], s67 offen")
                if bi == 0:
                    e(f"s_waitcnt vmcnt({len(batch)})")
                    do_ln()
                e("s_waitcnt vmcnt(0)")
                e(f"v_lshlrev_b32 v{V_T1}, 4, v{V_TID}")
                for n, i in enumerate(batch):
                    off = i * T * 16
                    if off > 65535:
                        e(f"v_add_u32 v{V_T2}, {off}, v{V_T1}")
                        e(f"ds_write_b128 v{V_T2}, {vr(V_ST+4*n,4)}")
                    else:
                        e(f"ds_write_b128 v{V_T1}, {vr(V_ST+4*n,4)} offset:{off}")
        e("s_waitcnt lgkmcnt(0)")
        e("s_barrier")
        def rd(s, buf):
            e(f"v_add_u32 v{V_WADDR}, {s*32*rowbytes}, v{V_WBASE}")
            for j in range(NT):
                b = V_WF + buf * 36 + 4 * j
                e(f"ds_read_b64_tr_b16 {vr(b,2)}, v{V_WADDR} offset:{j*32}")
                e(f"ds_read_b64_tr_b16 {vr(b+2,2)}, v{V_WADDR} offset:{j*32+4*rowbytes}")
        rd(0, 0)
        for s in range(kst):
            if s + 1 < kst:
                rd(s + 1, (s + 1) & 1)
                e(f"s_waitcnt lgkmcnt({min(2*NT,15)})") if 2*NT <= 15 else e("s_waitcnt lgkmcnt(0)")
            else:
                e("s_waitcnt lgkmcnt(0)")
            for j in range(NT):
                b = V_WF + (s & 1) * 36 + 4 * j
                e(f"v_mfma_f32_16x16x32_bf16 {vr(V_ACC+4*j,4)}, {vr(b,4)}, {vr(V_AF+4*(abase+s),4)}, {vr(V_ACC+4*j,4)}")
        if ch + 1 < nch:
            e("s_barrier")
    nop(e, 16)
    epi = c['epi']
    row = V_T7
    if epi == 'kv':
        e(f"v_lshrrev_b32 v{V_T0}, 5, v{row}")
        e(f"v_and_b32 v{V_T1}, 31, v{row}")
        for j in range(2):
            e(f"v_lshlrev_b32 v{V_T2}, 11, v{V_T0}")
            e(f"v_lshl_add_u32 v{V_T2}, v{V_T1}, 4, v{V_T2}")
            e(f"v_lshrrev_b32 v{V_T3}, 1, v{V_G}")
            e(f"v_lshl_add_u32 v{V_T2}, v{V_T3}, 9, v{V_T2}")
            e(f"v_and_b32 v{V_T3}, 1, v{V_G}")
            e(f"v_lshl_add_u32 v{V_T2}, v{V_T3}, 3, v{V_T2}")
            e(f"v_cvt_pk_bf16_f32 v{V_PK}, v{V_ACC+4*j}, v{V_ACC+4*j+1}")
            e(f"v_cvt_pk_bf16_f32 v{V_PK+1}, v{V_ACC+4*j+2}, v{V_ACC+4*j+3}")
            e(f"buffer_store_dwordx2 {vr(V_PK,2)}, v{V_T2}, s[{SO}:{SO+3}], 0 offen offset:{j*1024}")
        e(f"v_cmp_eq_u32 vcc, 1, v{V_G}")
        nop(e, 2)
        e(f"v_cndmask_b32 v{V_ACC+12}, v{V_ACC+12}, 1.0, vcc")
        e(f"v_lshlrev_b32 v{V_T2}, 11, v{V_T0}")
        e(f"v_lshrrev_b32 v{V_T3}, 4, v{V_T1}")
        e(f"v_lshl_add_u32 v{V_T2}, v{V_T3}, 10, v{V_T2}")
        e(f"v_bfe_u32 v{V_T3}, v{V_T1}, 2, 1")
        e(f"v_lshl_add_u32 v{V_T2}, v{V_T3}, 9, v{V_T2}")
        e(f"v_bfe_u32 v{V_T3}, v{V_T1}, 3, 1")
        e(f"v_lshl_add_u32 v{V_T2}, v{V_T3}, 3, v{V_T2}")
        e(f"v_and_b32 v{V_T3}, 3, v{V_T1}")
        e(f"v_lshl_add_u32 v{V_T2}, v{V_T3}, 1, v{V_T2}")
        e(f"v_lshl_add_u32 v{V_T2}, v{V_G}, 6, v{V_T2}")
        for j in range(2):
            e(f"v_cvt_pk_bf16_f32 v{V_PK}, v{V_ACC+8+4*j}, v{V_ACC+8+4*j+1}")
            e(f"v_cvt_pk_bf16_f32 v{V_PK+1}, v{V_ACC+8+4*j+2}, v{V_ACC+8+4*j+3}")
            o = WS_VF - WS_KF + j * 256
            nop(e, 1)
            e(f"v_add_u32 v{V_T3}, {o}, v{V_T2}")
            e(f"buffer_store_short v{V_PK}, v{V_T3}, s[{SO}:{SO+3}], 0 offen")
            e(f"buffer_store_short_d16_hi v{V_PK}, v{V_T3}, s[{SO}:{SO+3}], 0 offen offset:16")
            e(f"buffer_store_short v{V_PK+1}, v{V_T3}, s[{SO}:{SO+3}], 0 offen offset:32")
            e(f"buffer_store_short_d16_hi v{V_PK+1}, v{V_T3}, s[{SO}:{SO+3}], 0 offen offset:48")
        return
    ostride = c['ostride']
    e(f"s_mov_b32 s6, {ostride}")
    e(f"v_mul_lo_u32 v{V_OOFF}, v{row}, s6")
    e(f"v_lshl_add_u32 v{V_OOFF}, v{V_G}, 3, v{V_OOFF}")
    e(f"v_add_u32 v{V_OOFF}, s4, v{V_OOFF}")
    RT = V_WF
    if epi in ('res1', 'res2'):
        for j in range(NT):
            e(f"buffer_load_dwordx2 {vr(RT+4*j,2)}, v{V_OOFF}, s[{SR1}:{SR1+3}], 0 offen offset:{j*32}")
            if epi == 'res2':
                e(f"buffer_load_dwordx2 {vr(RT+4*j+2,2)}, v{V_OOFF}, s[{SR2}:{SR2+3}], 0 offen offset:{j*32}")
        e("s_waitcnt vmcnt(0)")
    if epi == 'q':
        e(f"s_mov_b32 s6, 0x{f32(DH**-0.5*math.log2(math.e)):08x}")
    if epi == 'gelu':
        k0 = math.sqrt(2/math.pi)
        e(f"s_mov_b32 s6, 0x{f32(-2*k0*math.log2(math.e)):08x}")
        e(f"s_mov_b32 s7, 0x{f32(-2*k0*0.044715*math.log2(math.e)):08x}")
    for j in range(NT):
        for r in range(4):
            a = V_ACC + 4 * j + r
            if epi == 'q':
                e(f"v_mul_f32 v{a}, s6, v{a}")
            elif epi == 'gelu':
                e(f"v_mul_f32 v{V_T0}, v{a}, v{a}")
                e(f"v_mov_b32 v{V_T2}, s6")
                e(f"v_fma_f32 v{V_T0}, v{V_T0}, s7, v{V_T2}")
                e(f"v_mul_f32 v{V_T0}, v{V_T0}, v{a}")
                e(f"v_exp_f32 v{V_T0}, v{V_T0}")
                nop(e, 1)
                e(f"v_add_f32 v{V_T0}, 1.0, v{V_T0}")
                e(f"v_rcp_f32 v{V_T0}, v{V_T0}")
                nop(e, 1)
                e(f"v_mul_f32 v{a}, v{a}, v{V_T0}")
            elif epi in ('res1', 'res2'):
                for q in range(1 if epi == 'res1' else 2):
                    src = RT + 4 * j + 2 * q + r // 2
                    if r % 2 == 0:
                        e(f"v_lshlrev_b32 v{V_T0}, 16, v{src}")
                    else:
                        e(f"v_and_b32 v{V_T0}, 0xffff0000, v{src}")
                    e(f"v_add_f32 v{a}, v{a}, v{V_T0}")
        e(f"v_cvt_pk_bf16_f32 v{V_PK}, v{V_ACC+4*j}, v{V_ACC+4*j+1}")
        e(f"v_cvt_pk_bf16_f32 v{V_PK+1}, v{V_ACC+4*j+2}, v{V_ACC+4*j+3}")
        e(f"buffer_store_dwordx2 {vr(V_PK,2)}, v{V_OOFF}, s[{SO}:{SO+3}], 0 offen offset:{j*32}")
        nop(e, 1)

PTR_REGS = dict(x=36, wq=38, wk=40, wv=42, wo=44, bx=46, w1=48, w2=50, w3=52, w4=54, out=56, dbg=58, ws=60)

def gemm_prologue(e, nwg, nrb):
    e(f"s_cmp_ge_u32 s2, {nwg}")
    e("s_cbranch_scc1 L_END_%s" % e.tag)
    e("s_load_dwordx16 s[36:51], s[0:1], 0")
    e("s_load_dwordx8 s[52:59], s[0:1], 64")
    e("s_load_dwordx2 s[60:61], s[0:1], 96")
    e(f"s_and_b32 s3, s2, {nrb-1}")
    e(f"s_lshr_b32 s4, s2, {int(math.log2(nrb))}")
    e("s_waitcnt lgkmcnt(0)")

def gemm_kernel(name, c, extra=None):
    e = Em(); e.tag = name
    kernel_head(e, name)
    nrb = S // (16 * c['nw'])
    ncb = c['N'] // (16 * c['NT'])
    nwg = nrb * (ncb + (1 if extra else 0))
    gemm_prologue(e, nwg, nrb)
    if extra:
        e(f"s_cmp_eq_u32 s4, {ncb}")
        e(f"s_cbranch_scc1 L_{name}_extra")
    gemm_body(e, c, PTR_REGS, name)
    e("s_endpgm")
    if extra:
        e.lab(f"L_{name}_extra")
        mk_srd(e, 12, PTR_REGS['wk'], 0, 640*20*2)
        mk_srd(e, 24, PTR_REGS['wv'], 0, 640*20*2)
        gemm_body(e, extra, PTR_REGS, name + "x")
        e("s_endpgm")
    e.lab(f"L_END_{name}")
    e("s_endpgm")
    lds = max(((c['KC'] * (c['NT']*2) + c['nw']*64 - 1)//(c['nw']*64)) * c['nw']*64*16,
              (extra['KC']*extra['NT']*32 if extra else 0))
    return e, nwg, c['nw']*64, lds

def attn_kernel(name):
    e = Em(); e.tag = name
    kernel_head(e, name)
    e(f"s_cmp_ge_u32 s2, 256")
    e(f"s_cbranch_scc1 L_END_{name}")
    e("s_load_dwordx2 s[4:5], s[0:1], 96")
    e("s_waitcnt lgkmcnt(0)")
    mk_srd(e, 8, 4, WS_Q, ACT)
    mk_srd(e, 12, 4, WS_KF, 0x40000)
    mk_srd(e, 16, 4, WS_O, ACT)
    QF = 8
    KF = 24
    VF = 32
    SS = 40
    NM = 72
    OO = 104
    PF = 136
    MX = 152
    KF2 = 156
    T0, T1, T2, T3 = 1, 2, 3, 4
    e(f"v_and_b32 v{T0}, 31, v0")
    e(f"v_bfe_u32 v{T1}, v0, 5, 1")
    e(f"v_lshrrev_b32 v{T2}, 6, v0")
    e(f"s_lshl_b32 s3, s2, 3")
    e(f"v_lshl_add_u32 v{T2}, v{T2}, 1, s3")
    e(f"s_movk_i32 s6, 1280")
    e(f"v_mul_lo_u32 v{T2}, v{T2}, s6")
    e(f"v_mul_u32_u24 v{T3}, 40, v{T0}")
    e(f"v_add_u32 v{T2}, v{T2}, v{T3}")
    e(f"v_lshl_add_u32 v5, v{T1}, 4, v{T2}")
    e(f"v_lshl_add_u32 v6, v{T1}, 3, v{T2}")
    for qt in range(2):
        for mf in range(2):
            e(f"buffer_load_dwordx4 {vr(QF+qt*8+mf*4,4)}, v5, s[8:11], 0 offen offset:{qt*1280+mf*32}")
    e(f"v_and_b32 v7, 63, v0")
    e(f"v_lshlrev_b32 v7, 4, v7")
    e(f"s_mov_b32 s20, 0x20000")
    for i in range(2):
        e(f"buffer_load_dwordx4 {vr(KF+4*i,4)}, v7, s[12:15], 0 offen offset:{i*1024}")
    for i in range(2):
        e(f"buffer_load_dwordx4 {vr(VF+4*i,4)}, v7, s[12:15], s20 offen offset:{i*1024}")
    for i in range(32):
        e(f"v_mov_b32 v{OO+i}, 0")
        e(f"v_mov_b32 v{NM+i}, 0")
    e("s_waitcnt vmcnt(0)")
    for qt in range(2):
        e(f"v_mfma_f32_32x32x16_bf16 {vr(SS+16*qt,16)}, {vr(KF,4)}, {vr(QF+8*qt,4)}, {vr(NM+16*qt,16)}")
        e(f"v_mfma_f32_32x32x16_bf16 {vr(SS+16*qt,16)}, {vr(KF+4,4)}, {vr(QF+8*qt+4,4)}, {vr(SS+16*qt,16)}")
    nop(e, 16)
    for qt in range(2):
        b = SS + 16 * qt
        e(f"v_max3_f32 v{MX+qt}, v{b}, v{b+1}, v{b+2}")
        for i in range(3, 15, 2):
            e(f"v_max3_f32 v{MX+qt}, v{MX+qt}, v{b+i}, v{b+i+1}")
        e(f"v_max_f32 v{MX+qt}, v{MX+qt}, v{b+15}")
        e(f"v_mov_b32 v{T3}, v{MX+qt}")
        nop(e, 2)
        e(f"v_permlane32_swap_b32 v{T3}, v{MX+qt}")
        nop(e, 2)
        e(f"v_max_f32 v{MX+qt}, v{MX+qt}, v{T3}")
        e(f"v_sub_f32 v{MX+qt}, 0, v{MX+qt}")
        for i in range(16):
            e(f"v_mov_b32 v{NM+16*qt+i}, v{MX+qt}")
    e(f"s_mov_b32 s21, 0")
    e(f"s_mov_b32 s25, 0x41000000")
    e.lab("L_attn_loop")
    e(f"s_add_u32 s22, s21, 2048")
    e(f"s_and_b32 s22, s22, 0x1ffff")
    e(f"s_add_u32 s23, s22, s20")
    for i in range(2):
        e(f"buffer_load_dwordx4 {vr(KF2+4*i,4)}, v7, s[12:15], s22 offen offset:{i*1024}")
    for i in range(2):
        e(f"buffer_load_dwordx4 {vr(KF2+8+4*i,4)}, v7, s[12:15], s23 offen offset:{i*1024}")
    for qt in range(2):
        e(f"v_mfma_f32_32x32x16_bf16 {vr(SS+16*qt,16)}, {vr(KF,4)}, {vr(QF+8*qt,4)}, {vr(NM+16*qt,16)}")
        e(f"v_mfma_f32_32x32x16_bf16 {vr(SS+16*qt,16)}, {vr(KF+4,4)}, {vr(QF+8*qt+4,4)}, {vr(SS+16*qt,16)}")
    nop(e, 16)
    for qt in range(2):
        b = SS + 16 * qt
        e(f"v_max3_f32 v{MX+qt}, v{b}, v{b+1}, v{b+2}")
        for i in range(3, 15, 2):
            e(f"v_max3_f32 v{MX+qt}, v{MX+qt}, v{b+i}, v{b+i+1}")
        e(f"v_max_f32 v{MX+qt}, v{MX+qt}, v{b+15}")
    e(f"v_max_f32 v{T3}, v{MX}, v{MX+1}")
    e(f"v_cmp_lt_f32 vcc, s25, v{T3}")
    nop(e, 2)
    e(f"s_cbranch_vccz L_attn_norescale")
    for qt in range(2):
        e(f"v_mov_b32 v{T3}, v{MX+qt}")
        nop(e, 2)
        e(f"v_permlane32_swap_b32 v{T3}, v{MX+qt}")
        nop(e, 2)
        e(f"v_max_f32 v{MX+qt}, v{MX+qt}, v{T3}")
        e(f"v_max_f32 v{MX+qt}, 0, v{MX+qt}")
        e(f"v_exp_f32 v{T3}, -v{MX+qt}")
        for i in range(16):
            e(f"v_sub_f32 v{NM+16*qt+i}, v{NM+16*qt+i}, v{MX+qt}")
            e(f"v_sub_f32 v{SS+16*qt+i}, v{SS+16*qt+i}, v{MX+qt}")
        nop(e, 16)
        for i in range(16):
            e(f"v_mul_f32 v{OO+16*qt+i}, v{OO+16*qt+i}, v{T3}")
    e.lab("L_attn_norescale")
    for qt in range(2):
        b = SS + 16 * qt
        for i in range(16):
            e(f"v_exp_f32 v{b+i}, v{b+i}")
        nop(e, 1)
        for i in range(8):
            e(f"v_cvt_pk_bf16_f32 v{PF+8*qt+i}, v{b+2*i}, v{b+2*i+1}")
    nop(e, 2)
    for qt in range(2):
        e(f"v_mfma_f32_32x32x16_bf16 {vr(OO+16*qt,16)}, {vr(VF,4)}, {vr(PF+8*qt,4)}, {vr(OO+16*qt,16)}")
        e(f"v_mfma_f32_32x32x16_bf16 {vr(OO+16*qt,16)}, {vr(VF+4,4)}, {vr(PF+8*qt+4,4)}, {vr(OO+16*qt,16)}")
    e("s_waitcnt vmcnt(0)")
    nop(e, 4)
    for i in range(16):
        e(f"v_mov_b32 v{KF+i}, v{KF2+i}")
    e(f"s_add_u32 s21, s21, 2048")
    e(f"s_cmp_lt_u32 s21, 0x20000")
    e(f"s_cbranch_scc1 L_attn_loop")
    nop(e, 16)
    e(f"v_and_b32 v{T0}, 31, v0")
    e(f"v_or_b32 v{T0}, 32, v{T0}")
    e(f"v_lshlrev_b32 v{T0}, 2, v{T0}")
    e(f"v_bfe_u32 v{T1}, v0, 5, 1")
    e(f"v_lshlrev_b32 v{T1}, 22, v{T1}")
    e(f"v_add_u32 v{T1}, v6, v{T1}")
    for qt in range(2):
        o = OO + 16 * qt
        e(f"ds_bpermute_b32 v{T2}, v{T0}, v{o+8}")
        e("s_waitcnt lgkmcnt(0)")
        e(f"v_rcp_f32 v{T2}, v{T2}")
        nop(e, 1)
        for i in range(12):
            e(f"v_mul_f32 v{o+i}, v{o+i}, v{T2}")
        for p in range(3):
            e(f"v_cvt_pk_bf16_f32 v{PF+2*p}, v{o+4*p}, v{o+4*p+1}")
            e(f"v_cvt_pk_bf16_f32 v{PF+2*p+1}, v{o+4*p+2}, v{o+4*p+3}")
        e(f"buffer_store_dwordx2 {vr(PF,2)}, v6, s[16:19], 0 offen offset:{qt*1280}")
        e(f"buffer_store_dwordx2 {vr(PF+2,2)}, v6, s[16:19], 0 offen offset:{qt*1280+16}")
        e(f"buffer_store_dwordx2 {vr(PF+4,2)}, v{T1}, s[16:19], 0 offen offset:{qt*1280+32}")
        nop(e, 2)
    e.lab(f"L_END_{name}")
    e("s_endpgm")
    return e, 256, 256, 0

def build():
    W = D * D * 2
    base = dict(nw=4, NT=5, K=D, KC=D, N=D, astride=D*2, asize=ACT, wsize=W, wstride=D*2, osize=ACT, ostride=D*2)
    qkv = dict(base, a=('in', 'x'), w=('in', 'wq'), o=('ws', WS_Q), mode='ln', epi='q')
    kv = dict(base, NT=4, a=('in', 'x'), w=None, wkv=True, o=('ws', WS_KF), osize=0x40000, mode='ln', epi='kv')
    wo = dict(base, a=('ws', WS_O), w=('in', 'wo'), o=('ws', WS_H), mode='plain', epi='res1', r1=('in', 'x'))
    w1 = dict(base, a=('ws', WS_H), w=('in', 'w1'), o=('ws', WS_G), mode='ln2', epi='gelu', xp=('ws', WS_XP))
    w2 = dict(base, a=('ws', WS_G), w=('in', 'w2'), o=('ws', WS_X1), mode='shift', epi='res1', r1=('ws', WS_XP))
    w3 = dict(base, nw=8, NT=9, KC=320, N=F, a=('ws', WS_X1), w=('in', 'w3'), wsize=D*F*2, wstride=F*2,
              o=('ws', WS_G2), osize=G2SZ, ostride=F*2, mode='ln', epi='gelu')
    w4 = dict(base, K=F, KC=576, a=('ws', WS_G2), asize=G2SZ, astride=F*2, w=('in', 'w4'), wsize=D*F*2,
              o=('in', 'out'), mode='plain', epi='res2', r1=('ws', WS_X1), r2=('ws', WS_H))
    ks = []
    ks.append(("k1_qkv_kernel",) + gemm_kernel("k1_qkv_kernel", qkv, kv))
    ks.append(("k2_attn_kernel",) + attn_kernel("k2_attn_kernel"))
    ks.append(("k3_wo_kernel",) + gemm_kernel("k3_wo_kernel", wo))
    ks.append(("k4_w1_kernel",) + gemm_kernel("k4_w1_kernel", w1))
    ks.append(("k5_w2_kernel",) + gemm_kernel("k5_w2_kernel", w2))
    ks.append(("k6_w3_kernel",) + gemm_kernel("k6_w3_kernel", w3))
    ks.append(("k7_w4_kernel",) + gemm_kernel("k7_w4_kernel", w4))
    return ks

HEADER = open('cdna_kernels/%s.s.ref' % KNAME).read().split("; Override launch")[0]

def main():
    ks = build()
    n = int(sys.argv[1]) if len(sys.argv) > 1 else len(ks)
    out = HEADER
    for name, e, nwg, thr, lds in ks[:n]:
        out += f"; @launch kernel={name} grid=({nwg},1,1) block=({thr},1,1) lds={lds}\n"
    out += '.amdgcn_target "amdgcn-amd-amdhsa--gfx950"\n.text\n'
    for name, e, nwg, thr, lds in ks:
        out += "\n".join(e.l) + "\n"
    out += '.section .rodata,"a"\n.p2align 6\n'
    for name, e, nwg, thr, lds in ks:
        out += kernel_desc(name)
    open('cdna_kernels/%s.s' % KNAME, 'w').write(out)
    print("generated", len(out), "bytes")

if __name__ == "__main__":
    main()
```

```python
import math, sys, struct

KNAME = "sequential_preLN__grouped_kv_mqa__mixer_s_mlp__prompt"

S, D, H, DH, F = 2048, 640, 32, 20, 1728
WS_Q, WS_KF, WS_VF, WS_O, WS_H, WS_XP, WS_G, WS_X1, WS_G2 = (
    0x0, 0x280000, 0x2A0000, 0x300000, 0x580000, 0x800000, 0xA80000, 0xD00000, 0xF80000)
ACT = S * D * 2
G2SZ = S * F * 2
ARG = dict(x=0, wq=8, wk=16, wv=24, wo=32, bx=40, w1=48, w2=56, w3=64, w4=72, out=80, dbg=88, ws=96)

def f32(x):
    return struct.unpack('<I', struct.pack('<f', x))[0]

class Em:
    def __init__(self):
        self.l = []
    def __call__(self, s):
        self.l.append("    " + s)
    def lab(self, s):
        self.l.append(s + ":")
    def raw(self, s):
        self.l.append(s)

def vr(b, n):
    return f"v[{b}:{b+n-1}]"

def mk_srd(e, sd, ptr, off, size):
    if off:
        e(f"s_add_u32 s{sd}, s{ptr}, 0x{off:x}")
        e(f"s_addc_u32 s{sd+1}, s{ptr+1}, 0")
    else:
        e(f"s_mov_b32 s{sd}, s{ptr}")
        e(f"s_mov_b32 s{sd+1}, s{ptr+1}")
    e(f"s_mov_b32 s{sd+2}, 0x{size:x}")
    e(f"s_mov_b32 s{sd+3}, 0x00020000")

def kernel_head(e, name):
    e.raw(f".globl {name}")
    e.raw(".p2align 8")
    e.raw(f".type {name},@function")
    e.lab(name)

def kernel_desc(name, vgpr=256, sgpr=96):
    return f""".amdhsa_kernel {name}
  .amdhsa_next_free_vgpr {vgpr}
  .amdhsa_next_free_sgpr {sgpr}
  .amdhsa_accum_offset {vgpr}
  .amdhsa_group_segment_fixed_size 0
  .amdhsa_kernarg_size 104
  .amdhsa_user_sgpr_count 2
  .amdhsa_user_sgpr_kernarg_segment_ptr 1
  .amdhsa_system_sgpr_workgroup_id_x 1
.end_amdhsa_kernel
"""

STAMP = None
def stamp(e, i):
    if STAMP and STAMP == getattr(e, 'tag', None):
        e("s_waitcnt lgkmcnt(0)") if False else None
        e(f"s_memtime s[{72+2*i}:{73+2*i}]")
def stamp_flush(e, n):
    if STAMP and STAMP == getattr(e, 'tag', None):
        e("s_waitcnt lgkmcnt(0)")
        e("s_cmp_lg_u32 s2, 5")
        e(f"s_cbranch_scc1 L_nostamp_{e.tag}")
        mk_srd(e, 92, 58, 0, 256)
        e("v_cmp_eq_u32 vcc, 0, v0")
        e("s_and_saveexec_b64 s[90:91], vcc")
        for i in range(n):
            e(f"s_sub_u32 s{72+2*i}, s{72+2*i}, s72") if i else None
        for i in range(1, n):
            e(f"v_mov_b32 v1, s{72+2*i}")
            e(f"buffer_store_dword v1, off, s[92:95], 0 offset:{4*i}")
        e("s_mov_b64 exec, s[90:91]")
        e.lab(f"L_nostamp_{e.tag}")

def nop(e, n):
    while n > 0:
        k = min(n, 16)
        e(f"s_nop {k-1}")
        n -= k

V_TID, V_M, V_G, V_T0, V_T1, V_T2, V_T3, V_T4, V_T5, V_T6, V_T7 = range(0, 11)
V_SUM, V_SQ, V_RSTD, V_NB, V_ONES, V_X16 , V_X32 = range(11, 18)
V_AOFF = 18
V_WADDR = 22
V_WBASE = 23
V_OOFF = 24
V_PK = 26
V_ACC = 28
V_WF = 64
V_AF = 136
V_ST = 64
V_WOFF = 25
V_RES = 216

def buf_ptr(e, spec, sd, size, ptrs):
    kind, val = spec
    if kind == 'in':
        mk_srd(e, sd, ptrs[val], 0, size)
    else:
        mk_srd(e, sd, ptrs['ws'], val, size)

def ln_stats(e, nreg, K):
    e(f"v_mov_b32 v{V_SUM}, 0")
    e(f"v_mov_b32 v{V_SQ}, 0")
    e(f"v_mov_b32 v{V_ONES}, 0x3f803f80")
    nop(e, 1)
    for i in range(nreg):
        e(f"v_dot2c_f32_bf16 v{V_SUM}, v{V_AF+i}, v{V_ONES}")
        e(f"v_dot2c_f32_bf16 v{V_SQ}, v{V_AF+i}, v{V_AF+i}")
    nop(e, 4)
    for src in (V_SUM, V_SQ):
        e(f"ds_swizzle_b32 v{V_T0}, v{src} offset:0x401F")
        e("s_waitcnt lgkmcnt(0)")
        e(f"v_add_f32 v{src}, v{src}, v{V_T0}")
        nop(e, 1)
        e(f"ds_bpermute_b32 v{V_T0}, v{V_X32}, v{src}")
        e("s_waitcnt lgkmcnt(0)")
        e(f"v_add_f32 v{src}, v{src}, v{V_T0}")
    e(f"v_mul_f32 v{V_SUM}, 0x{f32(1.0/K):08x}, v{V_SUM}")
    e(f"v_mul_f32 v{V_SQ}, 0x{f32(1.0/K):08x}, v{V_SQ}")
    e(f"v_fma_f32 v{V_SQ}, -v{V_SUM}, v{V_SUM}, v{V_SQ}")
    e(f"v_max_f32 v{V_SQ}, 0, v{V_SQ}")
    e(f"v_add_f32 v{V_SQ}, 0x{f32(1e-5):08x}, v{V_SQ}")
    e(f"v_rsq_f32 v{V_RSTD}, v{V_SQ}")
    nop(e, 1)
    e(f"v_mul_f32 v{V_NB}, v{V_SUM}, v{V_RSTD}")
    e(f"v_sub_f32 v{V_NB}, 0, v{V_NB}")

def ln_apply(e, nreg):
    for i in range(nreg):
        r = V_AF + i
        a, b = (V_T0, V_T1) if i % 2 == 0 else (V_T2, V_T3)
        e(f"v_lshlrev_b32 v{a}, 16, v{r}")
        e(f"v_and_b32 v{b}, 0xffff0000, v{r}")
        e(f"v_fma_f32 v{a}, v{a}, v{V_RSTD}, v{V_NB}")
        e(f"v_fma_f32 v{b}, v{b}, v{V_RSTD}, v{V_NB}")
        e(f"v_cvt_pk_bf16_f32 v{r}, v{a}, v{b}")

def gemm_body(e, c, ptrs, tag):
    nw, NT, K, KC = c['nw'], c['NT'], c['K'], c['KC']
    T = nw * 64
    rowbytes = NT * 32
    nch = K // KC
    kst = KC // 32
    mode = c['mode']
    SA, SW, SO, SR1, SR2, SX = 8, 12, 16, 20, 24, 28
    astride = c['astride']
    stamp(e, 0)
    buf_ptr(e, c['a'], SA, c['asize'], ptrs)
    if c.get('w') is not None:
        buf_ptr(e, c['w'], SW, c['wsize'], ptrs)
    buf_ptr(e, c['o'], SO, c['osize'], ptrs)
    if c.get('r1'): buf_ptr(e, c['r1'], SR1, ACT, ptrs)
    if c.get('r2'): buf_ptr(e, c['r2'], SR2, ACT, ptrs)
    if c.get('xp'): buf_ptr(e, c['xp'], SX, ACT, ptrs)
    e(f"v_and_b32 v{V_M}, 15, v{V_TID}")
    e(f"v_bfe_u32 v{V_G}, v{V_TID}, 4, 2")
    e(f"v_lshrrev_b32 v{V_T0}, 6, v{V_TID}")
    e(f"v_lshlrev_b32 v{V_T0}, 4, v{V_T0}")
    e(f"v_add_u32 v{V_T0}, v{V_T0}, v{V_M}")
    e(f"s_mul_i32 s5, s3, {16*nw}")
    e(f"v_add_u32 v{V_T0}, s5, v{V_T0}")
    e(f"v_mov_b32 v{V_T7}, v{V_T0}")
    e(f"v_and_b32 v{V_T1}, 63, v{V_TID}")
    e(f"v_xor_b32 v{V_X32}, 32, v{V_T1}")
    e(f"v_lshlrev_b32 v{V_X32}, 2, v{V_X32}")
    e(f"s_mov_b32 s6, {astride}")
    e(f"v_lshlrev_b32 v{V_T2}, 4, v{V_G}")
    shifts = [-1, 1, -2, 2] if mode == 'shift' else [0]
    for i, sh in enumerate(shifts):
        e(f"v_add_u32 v{V_T1}, {sh}, v{V_T0}" if sh else f"v_mov_b32 v{V_T1}, v{V_T0}")
        e(f"v_mul_lo_u32 v{V_T1}, v{V_T1}, s6")
        e(f"v_add_u32 v{V_AOFF+i}, v{V_T1}, v{V_T2}")
    for i in range(NT * 4):
        e(f"v_mov_b32 v{V_ACC+i}, 0")
    e(f"v_lshrrev_b32 v{V_T1}, 2, v{V_M}")
    e(f"v_lshl_add_u32 v{V_T1}, v{V_G}, 3, v{V_T1}")
    e(f"s_mov_b32 s7, {rowbytes}")
    e(f"v_mul_lo_u32 v{V_T1}, v{V_T1}, s7")
    e(f"v_and_b32 v{V_T2}, 3, v{V_M}")
    e(f"v_lshl_add_u32 v{V_WBASE}, v{V_T2}, 3, v{V_T1}")
    e(f"s_mul_i32 s4, s4, {NT*32}")

    epi = c['epi']
    row = V_T7
    nbuf = 2 if nch > 1 else 1
    chunk_bytes = 0
    if not c.get('wkv'):
        ppr = rowbytes // 16
        RPI = 64 // ppr
        nblk = (KC + RPI - 1) // RPI
        nper = (nblk + nw - 1) // nw
        chunk_bytes = nper * nw * RPI * rowbytes
        magic = (65536 + ppr - 1) // ppr
        e(f"v_and_b32 v{V_T1}, 63, v{V_TID}")
        e(f"v_mul_u32_u24 v{V_T2}, {magic}, v{V_T1}")
        e(f"v_lshrrev_b32 v{V_T2}, 16, v{V_T2}")
        e(f"v_mul_u32_u24 v{V_T3}, {ppr}, v{V_T2}")
        e(f"v_sub_u32 v{V_T3}, v{V_T1}, v{V_T3}")
        e(f"s_mov_b32 s66, {c['wstride']}")
        e(f"v_mul_lo_u32 v{V_T2}, v{V_T2}, s66")
        e(f"v_lshl_add_u32 v{V_WOFF}, v{V_T3}, 4, v{V_T2}")
        e(f"v_lshrrev_b32 v{V_T1}, 6, v{V_TID}")
        nop(e, 2)
        e(f"v_readfirstlane_b32 s64, v{V_T1}")
        nop(e, 4)
        e(f"s_mul_i32 s65, s64, {RPI*rowbytes}")
        e(f"s_mul_i32 s67, s64, {RPI*c['wstride']}")
        e(f"s_add_u32 s67, s67, s4")
    fullA = mode in ('ln', 'ln2')
    def loadA(ch):
        nA = (K // 32 if ch == 0 else 0) if fullA else kst
        for s in range(nA):
            ks = ch * kst + s
            ao = V_AOFF + (ks // 5 if mode == 'shift' else 0)
            dst = V_AF + 4 * s + (0 if fullA else (ch & 1) * 4 * kst)
            e(f"buffer_load_dwordx4 {vr(dst,4)}, v{ao}, s[{SA}:{SA+3}], 0 offen offset:{ks*64}")
        return nA
    nA0 = loadA(0)
    stamp(e, 7)
    if epi != 'kv':
        e(f"s_mov_b32 s6, {c['ostride']}")
        e(f"v_mul_lo_u32 v{V_OOFF}, v{row}, s6")
        e(f"v_lshl_add_u32 v{V_OOFF}, v{V_G}, 3, v{V_OOFF}")
        e(f"v_add_u32 v{V_OOFF}, s4, v{V_OOFF}")
    nres = 0
    if epi in ('res1', 'res2'):
        for j in range(NT):
            e(f"buffer_load_dwordx2 {vr(V_RES+4*j,2)}, v{V_OOFF}, s[{SR1}:{SR1+3}], 0 offen offset:{j*32}")
            nres += 1
            if epi == 'res2':
                e(f"buffer_load_dwordx2 {vr(V_RES+4*j+2,2)}, v{V_OOFF}, s[{SR2}:{SR2+3}], 0 offen offset:{j*32}")
                nres += 1
    def dmaW(ch):
        e(f"s_mov_b64 s[68:69], exec")
        e(f"s_mov_b32 exec_hi, 0x{(1 << (RPI*ppr-32)) - 1:x}")
        for i in range(nper):
            e(f"s_add_u32 m0, s65, {(ch % nbuf)*chunk_bytes + i*nw*RPI*rowbytes}")
            e(f"s_add_u32 s70, s67, {(ch*KC + i*nw*RPI)*c['wstride']}")
            e(f"buffer_load_dwordx4 v{V_WOFF}, s[{SW}:{SW+3}], s70 offen lds")
        e(f"s_mov_b64 exec, s[68:69]")
    def do_ln():
        if fullA:
            ln_stats(e, nA0 * 4, K)
            ln_apply(e, nA0 * 4)
            if c.get('xp'):
                e(f"s_cmp_lg_u32 s4, 0")
                e(f"s_cbranch_scc1 L_{tag}_noxp")
                for s in range(nA0):
                    e(f"buffer_store_dwordx4 {vr(V_AF+4*s,4)}, v{V_AOFF}, s[{SX}:{SX+3}], 0 offen offset:{s*64}")
                e.lab(f"L_{tag}_noxp")
            if mode == 'ln2':
                ln_stats(e, nA0 * 4, K)
                ln_apply(e, nA0 * 4)
    if c.get('wkv'):
        for r in range(4):
            e(f"v_mov_b32 v{V_ST+r}, 0")
        e(f"v_lshlrev_b32 v{V_T1}, 4, v{V_TID}")
        for i in range(20):
            if i == 16:
                e(f"v_add_u32 v{V_T1}, 65536, v{V_T1}")
            e(f"ds_write_b128 v{V_T1}, {vr(V_ST,4)} offset:{(i%16)*4096}")
        SK, SV = 12, 24
        e(f"v_lshlrev_b32 v{V_T2}, 2, v{V_TID}")
        for i in range(25):
            e(f"s_movk_i32 s64, {i*1024}")
            e(f"buffer_load_dword v{V_ST+i}, v{V_T2}, s[{SK}:{SK+3}], s64 offen")
            e(f"buffer_load_dword v{V_ST+25+i}, v{V_T2}, s[{SV}:{SV+3}], s64 offen")
        e(f"s_waitcnt vmcnt(50)")
        do_ln()
        e("s_waitcnt vmcnt(0) lgkmcnt(0)")
        e("s_barrier")
        for i in range(25):
            e(f"v_add_u32 v{V_T1}, {i*256}, v{V_TID}")
            e(f"v_mul_u32_u24 v{V_T2}, 6554, v{V_T1}")
            e(f"v_lshrrev_b32 v{V_T2}, 16, v{V_T2}")
            e(f"v_mul_u32_u24 v{V_T3}, 10, v{V_T2}")
            e(f"v_sub_u32 v{V_T3}, v{V_T1}, v{V_T3}")
            e(f"v_lshlrev_b32 v{V_T2}, 7, v{V_T2}")
            e(f"v_lshl_add_u32 v{V_T2}, v{V_T3}, 2, v{V_T2}")
            e(f"ds_write_b32 v{V_T2}, v{V_ST+i}")
            e(f"ds_write_b32 v{V_T2}, v{V_ST+25+i} offset:64")
        e("s_waitcnt lgkmcnt(0)")
    else:
        dmaW(0)
        if fullA:
            e(f"s_waitcnt vmcnt({nper})")
            do_ln()
    for ch in range(nch):
        npf = 0
        if ch + 1 < nch:
            npf = loadA(ch + 1) + nper
            dmaW(ch + 1)
        if ch == 0: stamp(e, 1)
        e(f"s_waitcnt vmcnt({npf})")
        if ch == 0: stamp(e, 2)
        e("s_barrier")
        if ch == 0: stamp(e, 3)
        abase = ch * kst if fullA else (ch & 1) * kst
        def rd(s, buf):
            e(f"v_add_u32 v{V_WADDR}, {(ch % nbuf)*chunk_bytes + s*32*rowbytes}, v{V_WBASE}")
            for j in range(NT):
                b = V_WF + buf * 36 + 4 * j
                e(f"ds_read_b64_tr_b16 {vr(b,2)}, v{V_WADDR} offset:{j*32}")
                e(f"ds_read_b64_tr_b16 {vr(b+2,2)}, v{V_WADDR} offset:{j*32+4*rowbytes}")
        rd(0, 0)
        for s in range(kst):
            if s + 1 < kst:
                rd(s + 1, (s + 1) & 1)
                e(f"s_waitcnt lgkmcnt({min(2*NT,15)})") if 2*NT <= 15 else e("s_waitcnt lgkmcnt(0)")
            else:
                e("s_waitcnt lgkmcnt(0)")
            for j in range(NT):
                b = V_WF + (s & 1) * 36 + 4 * j
                e(f"v_mfma_f32_16x16x32_bf16 {vr(V_ACC+4*j,4)}, {vr(b,4)}, {vr(V_AF+4*(abase+s),4)}, {vr(V_ACC+4*j,4)}")
        if ch + 2 < nch:
            e("s_barrier")
    nop(e, 16)
    stamp(e, 4)
    if epi == 'kv':
        e(f"v_lshrrev_b32 v{V_T0}, 5, v{row}")
        e(f"v_and_b32 v{V_T1}, 31, v{row}")
        for j in range(2):
            e(f"v_lshlrev_b32 v{V_T2}, 11, v{V_T0}")
            e(f"v_lshl_add_u32 v{V_T2}, v{V_T1}, 4, v{V_T2}")
            e(f"v_lshrrev_b32 v{V_T3}, 1, v{V_G}")
            e(f"v_lshl_add_u32 v{V_T2}, v{V_T3}, 9, v{V_T2}")
            e(f"v_and_b32 v{V_T3}, 1, v{V_G}")
            e(f"v_lshl_add_u32 v{V_T2}, v{V_T3}, 3, v{V_T2}")
            e(f"v_cvt_pk_bf16_f32 v{V_PK}, v{V_ACC+4*j}, v{V_ACC+4*j+1}")
            e(f"v_cvt_pk_bf16_f32 v{V_PK+1}, v{V_ACC+4*j+2}, v{V_ACC+4*j+3}")
            e(f"buffer_store_dwordx2 {vr(V_PK,2)}, v{V_T2}, s[{SO}:{SO+3}], 0 offen offset:{j*1024}")
        e(f"v_cmp_eq_u32 vcc, 1, v{V_G}")
        nop(e, 2)
        e(f"v_cndmask_b32 v{V_ACC+12}, v{V_ACC+12}, 1.0, vcc")
        e(f"v_lshlrev_b32 v{V_T2}, 11, v{V_T0}")
        e(f"v_lshrrev_b32 v{V_T3}, 4, v{V_T1}")
        e(f"v_lshl_add_u32 v{V_T2}, v{V_T3}, 10, v{V_T2}")
        e(f"v_bfe_u32 v{V_T3}, v{V_T1}, 2, 1")
        e(f"v_lshl_add_u32 v{V_T2}, v{V_T3}, 9, v{V_T2}")
        e(f"v_bfe_u32 v{V_T3}, v{V_T1}, 3, 1")
        e(f"v_lshl_add_u32 v{V_T2}, v{V_T3}, 3, v{V_T2}")
        e(f"v_and_b32 v{V_T3}, 3, v{V_T1}")
        e(f"v_lshl_add_u32 v{V_T2}, v{V_T3}, 1, v{V_T2}")
        e(f"v_lshl_add_u32 v{V_T2}, v{V_G}, 6, v{V_T2}")
        for j in range(2):
            e(f"v_cvt_pk_bf16_f32 v{V_PK}, v{V_ACC+8+4*j}, v{V_ACC+8+4*j+1}")
            e(f"v_cvt_pk_bf16_f32 v{V_PK+1}, v{V_ACC+8+4*j+2}, v{V_ACC+8+4*j+3}")
            o = WS_VF - WS_KF + j * 256
            nop(e, 1)
            e(f"v_add_u32 v{V_T3}, {o}, v{V_T2}")
            e(f"buffer_store_short v{V_PK}, v{V_T3}, s[{SO}:{SO+3}], 0 offen")
            e(f"buffer_store_short_d16_hi v{V_PK}, v{V_T3}, s[{SO}:{SO+3}], 0 offen offset:16")
            e(f"buffer_store_short v{V_PK+1}, v{V_T3}, s[{SO}:{SO+3}], 0 offen offset:32")
            e(f"buffer_store_short_d16_hi v{V_PK+1}, v{V_T3}, s[{SO}:{SO+3}], 0 offen offset:48")
        return
    RT = V_RES
    if epi == 'q':
        e(f"s_mov_b32 s6, 0x{f32(DH**-0.5*math.log2(math.e)):08x}")
    if epi == 'gelu':
        k0 = math.sqrt(2/math.pi)
        e(f"s_mov_b32 s6, 0x{f32(-2*k0*math.log2(math.e)):08x}")
        e(f"s_mov_b32 s7, 0x{f32(-2*k0*0.044715*math.log2(math.e)):08x}")
    for j in range(NT):
        for r in range(4):
            a = V_ACC + 4 * j + r
            if epi == 'q':
                e(f"v_mul_f32 v{a}, s6, v{a}")
            elif epi == 'gelu':
                e(f"v_mul_f32 v{V_T0}, v{a}, v{a}")
                e(f"v_mov_b32 v{V_T2}, s6")
                e(f"v_fma_f32 v{V_T0}, v{V_T0}, s7, v{V_T2}")
                e(f"v_mul_f32 v{V_T0}, v{V_T0}, v{a}")
                e(f"v_exp_f32 v{V_T0}, v{V_T0}")
                nop(e, 1)
                e(f"v_add_f32 v{V_T0}, 1.0, v{V_T0}")
                e(f"v_rcp_f32 v{V_T0}, v{V_T0}")
                nop(e, 1)
                e(f"v_mul_f32 v{a}, v{a}, v{V_T0}")
            elif epi in ('res1', 'res2'):
                for q in range(1 if epi == 'res1' else 2):
                    src = RT + 4 * j + 2 * q + r // 2
                    if r % 2 == 0:
                        e(f"v_lshlrev_b32 v{V_T0}, 16, v{src}")
                    else:
                        e(f"v_and_b32 v{V_T0}, 0xffff0000, v{src}")
                    e(f"v_add_f32 v{a}, v{a}, v{V_T0}")
        e(f"v_cvt_pk_bf16_f32 v{V_PK}, v{V_ACC+4*j}, v{V_ACC+4*j+1}")
        e(f"v_cvt_pk_bf16_f32 v{V_PK+1}, v{V_ACC+4*j+2}, v{V_ACC+4*j+3}")
        e(f"buffer_store_dwordx2 {vr(V_PK,2)}, v{V_OOFF}, s[{SO}:{SO+3}], 0 offen offset:{j*32}")
        nop(e, 1)

PTR_REGS = dict(x=36, wq=38, wk=40, wv=42, wo=44, bx=46, w1=48, w2=50, w3=52, w4=54, out=56, dbg=58, ws=60)

def gemm_prologue(e, nwg, nrb):
    e(f"s_cmp_ge_u32 s2, {nwg}")
    e("s_cbranch_scc1 L_END_%s" % e.tag)
    e("s_load_dwordx16 s[36:51], s[0:1], 0")
    e("s_load_dwordx8 s[52:59], s[0:1], 64")
    e("s_load_dwordx2 s[60:61], s[0:1], 96")
    e(f"s_and_b32 s3, s2, {nrb-1}")
    e(f"s_lshr_b32 s4, s2, {int(math.log2(nrb))}")
    e("s_waitcnt lgkmcnt(0)")

def lds_bytes(c):
    rowbytes = c['NT']*32; ppr = rowbytes//16; RPI = 64//ppr
    nblk = (c['KC']+RPI-1)//RPI; nper = (nblk + c['nw']-1)//c['nw']
    nch = c['K']//c['KC']
    return nper*c['nw']*RPI*rowbytes*(2 if nch > 1 else 1)

def gemm_kernel(name, c, extra=None):
    e = Em(); e.tag = name
    kernel_head(e, name)
    nrb = S // (16 * c['nw'])
    ncb = c['N'] // (16 * c['NT'])
    nwg = nrb * (ncb + (1 if extra else 0))
    gemm_prologue(e, nwg, nrb)
    if extra:
        e(f"s_cmp_eq_u32 s4, {ncb}")
        e(f"s_cbranch_scc1 L_{name}_extra")
    gemm_body(e, c, PTR_REGS, name)
    stamp(e, 5)
    e("s_waitcnt vmcnt(0)")
    stamp(e, 6)
    stamp_flush(e, 8)
    e("s_endpgm")
    if extra:
        e.lab(f"L_{name}_extra")
        mk_srd(e, 12, PTR_REGS['wk'], 0, 640*20*2)
        mk_srd(e, 24, PTR_REGS['wv'], 0, 640*20*2)
        gemm_body(e, extra, PTR_REGS, name + "x")
        e("s_endpgm")
    e.lab(f"L_END_{name}")
    e("s_endpgm")
    e.lds_need = lds_bytes(c)
    lds = max(lds_bytes(c), (extra['KC']*extra['NT']*32 if extra else 0))
    return e, nwg, c['nw']*64, lds

def attn_kernel(name):
    e = Em(); e.tag = name
    kernel_head(e, name)
    e(f"s_cmp_ge_u32 s2, 256")
    e(f"s_cbranch_scc1 L_END_{name}")
    e("s_load_dwordx2 s[4:5], s[0:1], 96")
    e("s_waitcnt lgkmcnt(0)")
    mk_srd(e, 8, 4, WS_Q, ACT)
    mk_srd(e, 12, 4, WS_KF, 0x40000)
    mk_srd(e, 16, 4, WS_O, ACT)
    QF = 8
    KF = 24
    VF = 32
    SS = 40
    NM = 72
    OO = 104
    PF = 136
    MX = 152
    KF2 = 156
    T0, T1, T2, T3 = 1, 2, 3, 4
    e(f"v_and_b32 v{T0}, 31, v0")
    e(f"v_bfe_u32 v{T1}, v0, 5, 1")
    e(f"v_lshrrev_b32 v{T2}, 6, v0")
    e(f"s_lshl_b32 s3, s2, 3")
    e(f"v_lshl_add_u32 v{T2}, v{T2}, 1, s3")
    e(f"s_movk_i32 s6, 1280")
    e(f"v_mul_lo_u32 v{T2}, v{T2}, s6")
    e(f"v_mul_u32_u24 v{T3}, 40, v{T0}")
    e(f"v_add_u32 v{T2}, v{T2}, v{T3}")
    e(f"v_lshl_add_u32 v5, v{T1}, 4, v{T2}")
    e(f"v_lshl_add_u32 v6, v{T1}, 3, v{T2}")
    for qt in range(2):
        for mf in range(2):
            e(f"buffer_load_dwordx4 {vr(QF+qt*8+mf*4,4)}, v5, s[8:11], 0 offen offset:{qt*1280+mf*32}")
    e(f"v_and_b32 v7, 63, v0")
    e(f"v_lshlrev_b32 v7, 4, v7")
    e(f"s_mov_b32 s20, 0x20000")
    for i in range(2):
        e(f"buffer_load_dwordx4 {vr(KF+4*i,4)}, v7, s[12:15], 0 offen offset:{i*1024}")
    for i in range(2):
        e(f"buffer_load_dwordx4 {vr(VF+4*i,4)}, v7, s[12:15], s20 offen offset:{i*1024}")
    for i in range(32):
        e(f"v_mov_b32 v{OO+i}, 0")
        e(f"v_mov_b32 v{NM+i}, 0")
    e("s_waitcnt vmcnt(0)")
    for qt in range(2):
        e(f"v_mfma_f32_32x32x16_bf16 {vr(SS+16*qt,16)}, {vr(KF,4)}, {vr(QF+8*qt,4)}, {vr(NM+16*qt,16)}")
        e(f"v_mfma_f32_32x32x16_bf16 {vr(SS+16*qt,16)}, {vr(KF+4,4)}, {vr(QF+8*qt+4,4)}, {vr(SS+16*qt,16)}")
    nop(e, 16)
    for qt in range(2):
        b = SS + 16 * qt
        e(f"v_max3_f32 v{MX+qt}, v{b}, v{b+1}, v{b+2}")
        for i in range(3, 15, 2):
            e(f"v_max3_f32 v{MX+qt}, v{MX+qt}, v{b+i}, v{b+i+1}")
        e(f"v_max_f32 v{MX+qt}, v{MX+qt}, v{b+15}")
        e(f"v_mov_b32 v{T3}, v{MX+qt}")
        nop(e, 2)
        e(f"v_permlane32_swap_b32 v{T3}, v{MX+qt}")
        nop(e, 2)
        e(f"v_max_f32 v{MX+qt}, v{MX+qt}, v{T3}")
        e(f"v_sub_f32 v{MX+qt}, 0, v{MX+qt}")
        for i in range(16):
            e(f"v_mov_b32 v{NM+16*qt+i}, v{MX+qt}")
    e(f"s_mov_b32 s25, 0x41000000")
    NSET = 4
    KS = [KF, KF2, KF2 + 16, KF2 + 32]
    VS = [VF, KF2 + 8, KF2 + 24, KF2 + 40]
    def loadkv(p, soff):
        for i in range(2):
            e(f"buffer_load_dwordx4 {vr(KS[p]+4*i,4)}, v7, s[12:15], {soff} offen offset:{i*1024}")
        for i in range(2):
            e(f"buffer_load_dwordx4 {vr(VS[p]+4*i,4)}, v7, s[12:15], s23 offen offset:{i*1024}")
    def qkl(qt, p):
        return [f"v_mfma_f32_32x32x16_bf16 {vr(SS+16*qt,16)}, {vr(KS[p],4)}, {vr(QF+8*qt,4)}, {vr(NM+16*qt,16)}",
                f"v_mfma_f32_32x32x16_bf16 {vr(SS+16*qt,16)}, {vr(KS[p]+4,4)}, {vr(QF+8*qt+4,4)}, {vr(SS+16*qt,16)}"]
    def pvl(qt, p):
        return [f"v_mfma_f32_32x32x16_bf16 {vr(OO+16*qt,16)}, {vr(VS[p],4)}, {vr(PF+8*qt,4)}, {vr(OO+16*qt,16)}",
                f"v_mfma_f32_32x32x16_bf16 {vr(OO+16*qt,16)}, {vr(VS[p]+4,4)}, {vr(PF+8*qt+4,4)}, {vr(OO+16*qt,16)}"]
    def qk(qt, p):
        for x in qkl(qt, p): e(x)
    def pv(qt, p):
        for x in pvl(qt, p): e(x)
    rare = []
    def softmax(qt, tag, inter=()):
        b = SS + 16 * qt
        inter = list(inter)
        def put():
            if inter:
                e(inter.pop(0))
        put()
        e(f"v_max3_f32 v{MX+qt}, v{b}, v{b+1}, v{b+2}")
        e(f"v_max3_f32 v{T3}, v{b+3}, v{b+4}, v{b+5}")
        e(f"v_max3_f32 v{MX+qt}, v{MX+qt}, v{b+6}, v{b+7}")
        e(f"v_max3_f32 v{T3}, v{T3}, v{b+8}, v{b+9}")
        e(f"v_max3_f32 v{MX+qt}, v{MX+qt}, v{b+10}, v{b+11}")
        e(f"v_max3_f32 v{T3}, v{T3}, v{b+12}, v{b+13}")
        e(f"v_max3_f32 v{MX+qt}, v{MX+qt}, v{b+14}, v{b+15}")
        e(f"v_max_f32 v{MX+qt}, v{MX+qt}, v{T3}")
        e(f"v_cmp_lt_f32 vcc, s25, v{MX+qt}")
        e(f"s_cbranch_vccnz L_rare_{tag}")
        e.lab(f"L_back_{tag}")
        rare.append((tag, qt))
        for i in range(16):
            e(f"v_exp_f32 v{b+i}, v{b+i}")
            if i in (1, 6, 11):
                put()
            if i % 2 == 1 and i >= 3:
                e(f"v_cvt_pk_bf16_f32 v{PF+8*qt+(i-3)//2}, v{b+i-3}, v{b+i-2}")
        e(f"v_cvt_pk_bf16_f32 v{PF+8*qt+7}, v{b+14}, v{b+15}")
        nop(e, 2)
    qk(0, 0)
    qk(1, 0)
    for t in (1, 2, 3):
        e(f"s_movk_i32 s22, {2048*t}")
        e(f"s_add_u32 s23, s22, s20")
        loadkv(t, "s22")
    nop(e, 16)
    softmax(0, "pa")
    e(f"s_movk_i32 s21, 2048")
    e.lab("L_attn_loop")
    for p in (1, 2, 3, 0):
        e("s_waitcnt vmcnt(8)")
        pm = (p - 1) % 4
        softmax(1, f"b{p}", qkl(0, p) + pvl(0, pm))
        e(f"s_add_u32 s22, s21, {2048*3}")
        e(f"s_and_b32 s22, s22, 0x1ffff")
        e(f"s_add_u32 s23, s22, s20")
        softmax(0, f"a{p}", pvl(1, pm) + qkl(1, p))
        loadkv(pm, "s22")
        e(f"s_add_u32 s21, s21, 2048")
        if p == 3:
            e(f"s_cmp_ge_u32 s21, 0x20000")
            e(f"s_cbranch_scc1 L_attn_tail")
    e(f"s_branch L_attn_loop")
    e.lab("L_attn_tail")
    softmax(1, "tb", pvl(0, 3))
    pv(1, 3)
    e(f"s_branch L_attn_epi")
    for tag, qt in rare:
        e.lab(f"L_rare_{tag}")
        e(f"v_mov_b32 v{T3}, v{MX+qt}")
        nop(e, 2)
        e(f"v_permlane32_swap_b32 v{T3}, v{MX+qt}")
        nop(e, 2)
        e(f"v_max_f32 v{MX+qt}, v{MX+qt}, v{T3}")
        e(f"v_max_f32 v{MX+qt}, 0, v{MX+qt}")
        e(f"v_exp_f32 v{T3}, -v{MX+qt}")
        for i in range(16):
            e(f"v_sub_f32 v{NM+16*qt+i}, v{NM+16*qt+i}, v{MX+qt}")
            e(f"v_sub_f32 v{SS+16*qt+i}, v{SS+16*qt+i}, v{MX+qt}")
        for i in range(16):
            e(f"v_mul_f32 v{OO+16*qt+i}, v{OO+16*qt+i}, v{T3}")
        e(f"s_branch L_back_{tag}")
    e.lab("L_attn_epi")
    nop(e, 16)
    e(f"v_and_b32 v{T0}, 31, v0")
    e(f"v_or_b32 v{T0}, 32, v{T0}")
    e(f"v_lshlrev_b32 v{T0}, 2, v{T0}")
    e(f"v_bfe_u32 v{T1}, v0, 5, 1")
    e(f"v_lshlrev_b32 v{T1}, 22, v{T1}")
    e(f"v_add_u32 v{T1}, v6, v{T1}")
    for qt in range(2):
        o = OO + 16 * qt
        e(f"ds_bpermute_b32 v{T2}, v{T0}, v{o+8}")
        e("s_waitcnt lgkmcnt(0)")
        e(f"v_rcp_f32 v{T2}, v{T2}")
        nop(e, 1)
        for i in range(12):
            e(f"v_mul_f32 v{o+i}, v{o+i}, v{T2}")
        for p in range(3):
            e(f"v_cvt_pk_bf16_f32 v{PF+2*p}, v{o+4*p}, v{o+4*p+1}")
            e(f"v_cvt_pk_bf16_f32 v{PF+2*p+1}, v{o+4*p+2}, v{o+4*p+3}")
        e(f"buffer_store_dwordx2 {vr(PF,2)}, v6, s[16:19], 0 offen offset:{qt*1280}")
        e(f"buffer_store_dwordx2 {vr(PF+2,2)}, v6, s[16:19], 0 offen offset:{qt*1280+16}")
        e(f"buffer_store_dwordx2 {vr(PF+4,2)}, v{T1}, s[16:19], 0 offen offset:{qt*1280+32}")
        nop(e, 2)
    e.lab(f"L_END_{name}")
    e("s_endpgm")
    return e, 256, 256, 0

def build():
    W = D * D * 2
    base = dict(nw=4, NT=5, K=D, KC=160, N=D, astride=D*2, asize=ACT, wsize=W, wstride=D*2, osize=ACT, ostride=D*2)
    qkv = dict(base, a=('in', 'x'), w=('in', 'wq'), o=('ws', WS_Q), mode='ln', epi='q')
    kv = dict(base, NT=4, KC=D, a=('in', 'x'), w=None, wkv=True, o=('ws', WS_KF), osize=0x40000, mode='ln', epi='kv')
    wo = dict(base, a=('ws', WS_O), w=('in', 'wo'), o=('ws', WS_H), mode='plain', epi='res1', r1=('in', 'x'))
    w1 = dict(base, a=('ws', WS_H), w=('in', 'w1'), o=('ws', WS_G), mode='ln2', epi='gelu', xp=('ws', WS_XP))
    w2 = dict(base, a=('ws', WS_G), w=('in', 'w2'), o=('ws', WS_X1), mode='shift', epi='res1', r1=('ws', WS_XP))
    w3 = dict(base, nw=8, NT=9, KC=160, N=F, a=('ws', WS_X1), w=('in', 'w3'), wsize=D*F*2, wstride=F*2,
              o=('ws', WS_G2), osize=G2SZ, ostride=F*2, mode='ln', epi='gelu')
    w4 = dict(base, K=F, KC=288, a=('ws', WS_G2), asize=G2SZ, astride=F*2, w=('in', 'w4'), wsize=D*F*2,
              o=('in', 'out'), mode='plain', epi='res2', r1=('ws', WS_X1), r2=('ws', WS_H))
    ks = []
    ks.append(("k1_qkv_kernel",) + gemm_kernel("k1_qkv_kernel", qkv, kv))
    ks.append(("k2_attn_kernel",) + attn_kernel("k2_attn_kernel"))
    ks.append(("k3_wo_kernel",) + gemm_kernel("k3_wo_kernel", wo))
    ks.append(("k4_w1_kernel",) + gemm_kernel("k4_w1_kernel", w1))
    ks.append(("k5_w2_kernel",) + gemm_kernel("k5_w2_kernel", w2))
    ks.append(("k6_w3_kernel",) + gemm_kernel("k6_w3_kernel", w3))
    ks.append(("k7_w4_kernel",) + gemm_kernel("k7_w4_kernel", w4))
    return ks

HEADER = open('cdna_kernels/%s.s.ref' % KNAME).read().split("; Override launch")[0]

def main():
    global STAMP
    import os
    STAMP = os.environ.get('STAMP')
    ks = build()
    n = int(sys.argv[1]) if len(sys.argv) > 1 else len(ks)
    out = HEADER
    for name, e, nwg, thr, lds in ks[:n]:
        out += f"; @launch kernel={name} grid=({nwg},1,1) block=({thr},1,1) lds={lds}\n"
    out += '.amdgcn_target "amdgcn-amd-amdhsa--gfx950"\n.text\n'
    for name, e, nwg, thr, lds in ks:
        out += "\n".join(e.l) + "\n"
    out += '.section .rodata,"a"\n.p2align 6\n'
    for name, e, nwg, thr, lds in ks:
        out += kernel_desc(name)
    open('cdna_kernels/%s.s' % KNAME, 'w').write(out)
    print("generated", len(out), "bytes")

if __name__ == "__main__":
    main()
```
